```python
import torch

def _softmax(x, axis=-1):
    return torch.softmax(x, dim=axis)
def _gelu(x):
    return torch.nn.functional.gelu(x, approximate="tanh")
def _silu(x):
    return torch.nn.functional.silu(x)
def _sigmoid(x):
    return torch.sigmoid(x)
def _layernorm(x, axis=-1, eps=1e-5):
    m = x.mean(dim=axis, keepdim=True)
    v = x.var(dim=axis, keepdim=True, unbiased=False)
    return (x - m) / torch.sqrt(v + eps)
def _scatter_add(tgt, idx, src, axis=0):
    return tgt.clone().index_add_(axis, idx, src)
def _segment_sum(src, seg, n):
    out = torch.zeros((n,) + src.shape[1:], dtype=src.dtype)
    return out.index_add_(0, seg, src)
def _pad(x, pw):
    flat = tuple(v for pair in reversed(pw) for v in pair)
    return torch.nn.functional.pad(x, flat)

kernel_name = 'sequential_preLN__ssm_conv_h3__glu_gated_bilinear__prompt'

def setup_inputs():

    _w = (lambda a: (lambda t: t.to(torch.bfloat16) if t.is_floating_point() else t)(torch.as_tensor(a)))
    def _A_setup():
        B, S, D = 1, 2048, 640
        ks = 4
        return {
            "q": _w((lambda *s: torch.randn(*s, dtype=torch.bfloat16) * 0.05)(B, S, D)),
            "k": _w((lambda *s: torch.randn(*s, dtype=torch.bfloat16) * 0.2)(B, S, D)),
            "v": _w((lambda *s: torch.randn(*s, dtype=torch.bfloat16) * 0.2)(B, S, D)),
            "shift_k": _w((lambda *s: torch.randn(*s, dtype=torch.bfloat16) * 0.2)(D, ks) * 0.5),
            "ssm_k": _w((lambda *s: torch.randn(*s, dtype=torch.bfloat16) * 0.4)(D, S) * (1.0 / S ** 0.5)),
            "ssm_D": _w((lambda *s: torch.randn(*s, dtype=torch.bfloat16) * 0.2)(D)),
        }
    _A_in = _A_setup()

    def _B_setup():
        B, S, D, F = 1, 2048, 640, 1536
        return {
            "x": _w((lambda *s: torch.randn(*s, dtype=torch.bfloat16) * 0.05)(B, S, D)),
            "w_gate": _w((lambda *s: torch.randn(*s, dtype=torch.bfloat16) * 0.2)(D, F) * (D ** -0.5)),
            "w_up": _w((lambda *s: torch.randn(*s, dtype=torch.bfloat16) * 0.2)(D, F) * (D ** -0.5)),
            "w_down": _w((lambda *s: torch.randn(*s, dtype=torch.bfloat16) * 0.2)(F, D) * (F ** -0.5)),
        }
    _B_in = _B_setup()

    return {
        "A_q": _A_in["q"],
        "A_k": _A_in["k"],
        "A_v": _A_in["v"],
        "A_shift_k": _A_in["shift_k"],
        "A_ssm_k": _A_in["ssm_k"],
        "A_ssm_D": _A_in["ssm_D"],
        "B_x": _B_in["x"],
        "B_w_gate": _B_in["w_gate"],
        "B_w_up": _B_in["w_up"],
        "B_w_down": _B_in["w_down"],
    }

def reference(A_q, A_k, A_v, A_shift_k, A_ssm_k, A_ssm_D, B_x, B_w_gate, B_w_up, B_w_down):
    def _A_ref(q, k, v, shift_k, ssm_k, ssm_D):
        B, S, D = q.shape
        ks = shift_k.shape[-1]
        k_pad = _pad(k, ((0, 0), (ks - 1, 0), (0, 0)))
        k_shift = torch.zeros_like(k)
        for t in range(ks):
            k_shift = k_shift + k_pad[:, t:t + S, :] * shift_k[:, ks - 1 - t][None, None, :]
        kv = k_shift * v
        L = 2 * S
        kv_pad = _pad(kv, ((0, 0), (0, S), (0, 0)))
        kf_pad = _pad(ssm_k, ((0, 0), (0, S)))
        kv_f = (lambda x, axes=(-2,-1): torch.fft.rfft2(x.float(), dim=axes))(kv_pad[:, None, :, :], axes=(1, 2))
        kf_f = (lambda x, axes=(-2,-1): torch.fft.rfft2(x.float(), dim=axes))(kf_pad[:, None, :], axes=(1, 2))
        kf_f = (lambda x, *d: x.permute(*d))(kf_f, 1, 2, 0)
        y_f = kv_f * kf_f[None, :, :, :]
        y = (lambda x, s, axes=(-2,-1): torch.fft.irfft2(x, s=s, dim=axes).to(torch.bfloat16))(y_f, (1, L), axes=(1, 2))[:, 0, :S, :]
        y = y + kv * ssm_D[None, None, :]
        return q * y

    def _B_ref(x, w_gate, w_up, w_down):
        g = torch.einsum("bsd,df->bsf", x, w_gate)
        u = torch.einsum("bsd,df->bsf", x, w_up)
        h = g * u
        return torch.einsum("bsf,fd->bsd", h, w_down)

    x = A_q
    h = x + _A_ref(_layernorm(x, axis=-1), A_k, A_v, A_shift_k, A_ssm_k, A_ssm_D)
    h2 = h + _B_ref(_layernorm(h, axis=-1), B_w_gate, B_w_up, B_w_down)
    return h2
```

```python
import haz
NAME = "sequential_preLN__ssm_conv_h3__glu_gated_bilinear__prompt"
HEADER = open("cdna_kernels/%s.s.ref" % NAME).read().split("; Override launch geometry")[0]

class Kern:
    def __init__(self, name, grid, block, lds=0, vgpr=128, sgpr=96, agpr=0, wgy=False):
        self.name = name; self.grid = grid; self.block = block; self.lds = lds
        self.vgpr = vgpr; self.sgpr = sgpr; self.agpr = agpr; self.wgy = wgy
        self.lines = []
        self._lab = 0
    def __call__(self, s):
        for l in s.strip("\n").split("\n"):
            l = l.strip()
            if not l: continue
            if l.endswith(":") or l.startswith(";"):
                self.lines.append(l)
            else:
                self.lines.append("    " + l)
    def label(self, base="L"):
        self._lab += 1
        return f"{self.name}_{base}{self._lab}"
    def srd(self, d, base, nbytes):
        self(f"""
        s_mov_b32 s{d}, s{base}
        s_mov_b32 s{d+1}, s{base+1}
        s_mov_b32 s{d+2}, {nbytes:#x}
        s_mov_b32 s{d+3}, 0x00020000""")
    def srd_off(self, d, base, off, nbytes):
        self(f"""
        s_add_u32 s{d}, s{base}, {off:#x}
        s_addc_u32 s{d+1}, s{base+1}, 0
        s_mov_b32 s{d+2}, {nbytes:#x}
        s_mov_b32 s{d+3}, 0x00020000""")
    def text(self):
        acc = (self.vgpr + 3) // 4 * 4
        total = acc + self.agpr if self.agpr else self.vgpr
        body = "\n".join(self.lines)
        t = f""".text
.globl {self.name}
.p2align 8
.type {self.name},@function
{self.name}:
{body}
"""
        d = f""".amdhsa_kernel {self.name}
  .amdhsa_next_free_vgpr {total}
  .amdhsa_next_free_sgpr {self.sgpr}
  .amdhsa_accum_offset {acc}
  .amdhsa_group_segment_fixed_size 0
  .amdhsa_kernarg_size 104
  .amdhsa_user_sgpr_count 2
  .amdhsa_user_sgpr_kernarg_segment_ptr 1
  .amdhsa_system_sgpr_workgroup_id_x 1
""" + ("  .amdhsa_system_sgpr_workgroup_id_y 1\n" if self.wgy else "") + ".end_amdhsa_kernel\n"
        return t, d

def build(launches, path):
    out = HEADER
    for k in launches:
        g = k.grid; b = k.block
        out += f"; @launch kernel={k.name} grid=({g[0]},{g[1]},{g[2]}) block=({b[0]},{b[1]},{b[2]}) lds={k.lds}\n"
    out += '.amdgcn_target "amdgcn-amd-amdhsa--gfx950"\n'
    seen = []; descs = []
    for k in launches:
        if k in seen: continue
        seen.append(k)
        t, d = k.text()
        haz.check(k.lines, k.name)
        out += t; descs.append(d)
    out += '.section .rodata,"a"\n'
    for d in descs:
        out += ".p2align 6\n" + d
    open(path, "w").write(out)
    return out
```

```python
import sys
from asmb import *
S, D, F = 2048, 640, 1536
WS_KV, WS_H, WS_HN, WS_HH = 0, 8<<20, 16<<20, 24<<20
NB_SD2 = S*D*2; NB_SD4 = S*D*4

def n1():
    k = Kern("n1_kernel", (2048,1,1), (640,1,1), vgpr=32)
    k(f"""
    s_cmp_ge_u32 s2, {S}
    s_cbranch_scc1 n1_end
    s_load_dwordx2 s[4:5], s[0:1], 8
    s_load_dwordx2 s[6:7], s[0:1], 16
    s_load_dwordx2 s[8:9], s[0:1], 24
    s_load_dwordx2 s[10:11], s[0:1], 96
    s_waitcnt lgkmcnt(0)""")
    k.srd(12, 4, NB_SD2); k.srd(16, 6, NB_SD2); k.srd(20, 8, D*8); k.srd_off(24, 10, WS_KV, NB_SD4)
    k(f"""
    s_mul_i32 s3, s2, {D*2}
    v_lshlrev_b32 v1, 1, v0
    v_add_u32 v1, s3, v1
    v_lshlrev_b32 v2, 3, v0
    buffer_load_dwordx2 v[4:5], v2, s[20:23], 0 offen   ; shift_k[d,0..3]
    buffer_load_ushort v6, v1, s[16:19], 0 offen  ; v
    buffer_load_ushort v8, v1, s[12:15], 0 offen  ; k[s]
    v_mov_b32 v9, 0
    v_mov_b32 v10, 0
    v_mov_b32 v11, 0
    s_cmp_lt_u32 s2, 1
    s_cbranch_scc1 n1_skip
    v_subrev_u32 v3, {D*2}, v1
    buffer_load_ushort v9, v3, s[12:15], 0 offen
    s_cmp_lt_u32 s2, 2
    s_cbranch_scc1 n1_skip
    v_subrev_u32 v3, {D*4}, v1
    buffer_load_ushort v10, v3, s[12:15], 0 offen
    s_cmp_lt_u32 s2, 3
    s_cbranch_scc1 n1_skip
    v_subrev_u32 v3, {D*6}, v1
    buffer_load_ushort v11, v3, s[12:15], 0 offen
    n1_skip:
    s_waitcnt vmcnt(0)
    v_lshlrev_b32 v12, 16, v4
    v_and_b32 v13, 0xffff0000, v4
    v_lshlrev_b32 v14, 16, v5
    v_and_b32 v15, 0xffff0000, v5
    v_lshlrev_b32 v6, 16, v6
    v_lshlrev_b32 v8, 16, v8
    v_lshlrev_b32 v9, 16, v9
    v_lshlrev_b32 v10, 16, v10
    v_lshlrev_b32 v11, 16, v11
    v_mul_f32 v16, v8, v12
    v_fma_f32 v16, v9, v13, v16
    v_fma_f32 v16, v10, v14, v16
    v_fma_f32 v16, v11, v15, v16
    v_mul_f32 v16, v16, v6
    v_lshlrev_b32 v1, 1, v1
    buffer_store_dword v16, v1, s[24:27], 0 offen
    s_waitcnt vmcnt(0)
    n1_end:
    s_endpgm""")
    return k

def rowsum(k, vsrc, vdst, slot):
    k(f"""
    v_mov_b32 v30, {slot*4}
    ds_add_f32 v30, v{vsrc}
    s_waitcnt lgkmcnt(0)
    s_barrier
    ds_read_b32 v{vdst}, v30
    s_waitcnt lgkmcnt(0)""")

def n2():
    k = Kern("n2_kernel", (2048,1,1), (640,1,1), lds=64, vgpr=32)
    k(f"""
    s_cmp_ge_u32 s2, {S}
    s_cbranch_scc1 n2_end
    s_load_dwordx2 s[4:5], s[0:1], 0
    s_load_dwordx2 s[6:7], s[0:1], 32
    s_load_dwordx2 s[8:9], s[0:1], 40
    s_load_dwordx2 s[10:11], s[0:1], 96
    v_mov_b32 v30, 0
    v_mov_b32 v28, 0
    v_mov_b32 v29, 0
    ds_write_b64 v30, v[28:29]
    ds_write_b64 v30, v[28:29] offset:8
    s_waitcnt lgkmcnt(0)
    s_barrier""")
    k.srd(12, 4, NB_SD2); k.srd(16, 6, D*S*2); k.srd(20, 8, D*2); k.srd_off(24, 10, WS_KV, NB_SD4)
    k.srd_off(28, 10, WS_H, NB_SD4); k.srd_off(32, 10, WS_HN, NB_SD4)
    k(f"""
    s_mul_i32 s3, s2, {D*4}
    v_lshlrev_b32 v1, 2, v0
    v_add_u32 v1, s3, v1
    v_mov_b32 v2, v1
    v_lshlrev_b32 v3, 12, v0
    v_mov_b32 v4, 0               ; acc
    s_mov_b32 s36, 0
    n2_loop:
    buffer_load_dword v5, v2, s[24:27], 0 offen
    buffer_load_ushort v6, v3, s[16:19], 0 offen
    v_subrev_u32 v2, {D*4}, v2
    v_add_u32 v3, 2, v3
    s_waitcnt vmcnt(0)
    v_lshlrev_b32 v6, 16, v6
    v_fma_f32 v4, v5, v6, v4
    s_add_u32 s36, s36, 1
    s_cmp_le_u32 s36, s2
    s_cbranch_scc1 n2_loop
    buffer_load_dword v5, v1, s[24:27], 0 offen
    v_lshlrev_b32 v7, 1, v0
    buffer_load_ushort v6, v7, s[20:23], 0 offen
    v_lshrrev_b32 v7, 1, v1
    buffer_load_ushort v8, v7, s[12:15], 0 offen
    s_waitcnt vmcnt(0)
    v_lshlrev_b32 v6, 16, v6
    v_fma_f32 v4, v5, v6, v4      ; z
    v_lshlrev_b32 v8, 16, v8      ; q
    """)
    rowsum(k, 8, 9, 0)
    k(f"""
    s_mov_b32 s37, {0x3acccccd}   ; 1/640
    v_mul_f32 v9, s37, v9
    v_sub_f32 v10, v8, v9
    v_mul_f32 v11, v10, v10""")
    rowsum(k, 11, 12, 1)
    k(f"""
    v_mul_f32 v12, s37, v12
    v_add_f32 v12, 0x3727c5ac, v12
    v_rsq_f32 v12, v12
    s_nop 1
    v_mul_f32 v10, v10, v12       ; qn
    v_fma_f32 v13, v10, v4, v8    ; h
    buffer_store_dword v13, v1, s[28:31], 0 offen""")
    rowsum(k, 13, 9, 2)
    k(f"""
    v_mul_f32 v9, s37, v9
    v_sub_f32 v10, v13, v9
    v_mul_f32 v11, v10, v10""")
    rowsum(k, 11, 12, 3)
    k(f"""
    v_mul_f32 v12, s37, v12
    v_add_f32 v12, 0x3727c5ac, v12
    v_rsq_f32 v12, v12
    s_nop 1
    v_mul_f32 v10, v10, v12       ; hn
    buffer_store_dword v10, v1, s[32:35], 0 offen
    s_waitcnt vmcnt(0)
    n2_end:
    s_endpgm""")
    return k

def n3():
    k = Kern("n3_kernel", (2048*8,1,1), (256,1,1), vgpr=32)
    k(f"""
    s_lshr_b32 s3, s2, 3
    s_and_b32 s2, s2, 7
    s_cmp_ge_u32 s3, {S}
    s_cbranch_scc1 n3_end
    s_cmp_ge_u32 s2, 6
    s_cbranch_scc1 n3_end
    s_load_dwordx2 s[4:5], s[0:1], 56
    s_load_dwordx2 s[6:7], s[0:1], 64
    s_load_dwordx2 s[10:11], s[0:1], 96
    s_waitcnt lgkmcnt(0)""")
    k.srd(12, 4, D*F*2); k.srd(16, 6, D*F*2); k.srd_off(24, 10, WS_HN, NB_SD4); k.srd_off(28, 10, WS_HH, S*F*4)
    k(f"""
    s_lshl_b32 s2, s2, 8
    v_add_u32 v1, s2, v0          ; f
    v_lshlrev_b32 v2, 1, v1       ; W off
    s_mul_i32 s36, s3, {D*4}
    v_mov_b32 v3, s36
    v_mov_b32 v4, 0
    v_mov_b32 v5, 0
    s_mov_b32 s37, 0
    n3_loop:
    buffer_load_dword v6, v3, s[24:27], 0 offen
    buffer_load_ushort v7, v2, s[12:15], 0 offen
    buffer_load_ushort v8, v2, s[16:19], 0 offen
    v_add_u32 v3, 4, v3
    v_add_u32 v2, {F*2}, v2
    s_waitcnt vmcnt(0)
    v_lshlrev_b32 v7, 16, v7
    v_lshlrev_b32 v8, 16, v8
    v_fma_f32 v4, v6, v7, v4
    v_fma_f32 v5, v6, v8, v5
    s_add_u32 s37, s37, 1
    s_cmp_lt_u32 s37, {D}
    s_cbranch_scc1 n3_loop
    v_mul_f32 v4, v4, v5
    s_mul_i32 s36, s3, {F*4}
    v_lshlrev_b32 v1, 2, v1
    v_add_u32 v1, s36, v1
    buffer_store_dword v4, v1, s[28:31], 0 offen
    s_waitcnt vmcnt(0)
    n3_end:
    s_endpgm""")
    return k

def n4():
    k = Kern("n4_kernel", (2048,1,1), (640,1,1), vgpr=32)
    k(f"""
    s_cmp_ge_u32 s2, {S}
    s_cbranch_scc1 n4_end
    s_load_dwordx2 s[4:5], s[0:1], 72
    s_load_dwordx2 s[6:7], s[0:1], 80
    s_load_dwordx2 s[10:11], s[0:1], 96
    s_waitcnt lgkmcnt(0)""")
    k.srd(12, 4, D*F*2); k.srd(16, 6, NB_SD2); k.srd_off(24, 10, WS_H, NB_SD4); k.srd_off(28, 10, WS_HH, S*F*4)
    k(f"""
    v_lshlrev_b32 v2, 1, v0
    s_mul_i32 s36, s2, {F*4}
    v_mov_b32 v3, s36
    s_mul_i32 s36, s2, {D*4}
    v_lshlrev_b32 v1, 2, v0
    v_add_u32 v1, s36, v1
    buffer_load_dword v4, v1, s[24:27], 0 offen
    s_mov_b32 s37, 0
    n4_loop:
    buffer_load_dword v6, v3, s[28:31], 0 offen
    buffer_load_ushort v7, v2, s[12:15], 0 offen
    v_add_u32 v3, 4, v3
    v_add_u32 v2, {D*2}, v2
    s_waitcnt vmcnt(0)
    v_lshlrev_b32 v7, 16, v7
    v_fma_f32 v4, v6, v7, v4
    s_add_u32 s37, s37, 1
    s_cmp_lt_u32 s37, {F}
    s_cbranch_scc1 n4_loop
    v_cvt_pk_bf16_f32 v4, v4, v4
    v_lshrrev_b32 v1, 1, v1
    buffer_store_short v4, v1, s[16:19], 0 offen
    s_waitcnt vmcnt(0)
    n4_end:
    s_endpgm""")
    return k

def empty(name="e_kernel", grid=256):
    k = Kern(name, (grid,1,1), (256,1,1), vgpr=32)
    k("s_endpgm")
    return k

if __name__ == "__main__":
    ks = [n1(), n2(), n3(), n4()]
    build(ks, "naive0.s")
    e = empty()
    build([e]*40 + ks, "naive40.s")
    build(ks + [e]*40, "naive40b.s")
```

```python
import sys
from asmb import *
S=2048; D=640; F=1536
KVP=0; XT=0x280000; HT=0x500000; STQ=0x780000; R2=0x790000; WC=0x800000; WDP=0xC00000; HH=0xE00000
NB = S*D*2
class Cfg:
    WSB = 0
    ld_in = "nt"
    st_mid = ""
    st_out = ""
    ld_mid = ""
    ts = False
    def __init__(self, **kw):
        for k,v in kw.items(): setattr(self,k,v)

TS = 0x1400000
def ts_begin(k, c):
    if getattr(c, "ts", False):
        k("s_memrealtime s[88:89]\ns_memtime s[92:93]")
def ts_mark(k, c, i):
    if getattr(c, "ts", False) == "mark":
        k(f"s_memrealtime s[{92+2*i}:{93+2*i}]")
def ts_end(k, c, kidx, wave_sreg):
    if getattr(c, "ts", False):
        k(f"""
        s_waitcnt vmcnt(0) lgkmcnt(0)
        s_memrealtime s[90:91]
        {"s_memtime s[94:95]" if c.ts != "mark" else ""}
        s_load_dwordx2 s[84:85], s[0:1], 96
        s_lshl_b32 s86, s2, 3
        s_add_u32 s86, s86, s{wave_sreg}
        s_lshl_b32 s86, s86, 4
        s_add_u32 s86, s86, {TS + kidx*1024*8*16:#x}
        s_mov_b64 exec, 1
        s_waitcnt lgkmcnt(0)
        s_add_u32 s84, s84, s86
        s_addc_u32 s85, s85, 0
        v_mov_b32 v0, s88
        v_mov_b32 v1, s90
        v_mov_b32 v2, s92
        v_mov_b32 v3, s94
        v_mov_b32 v4, 0
        global_store_dwordx4 v4, v[0:3], s[84:85]""")

def p1(c):
    k = Kern("p1_kernel", (448,1,1), (256,1,1), lds=25600, vgpr=64, sgpr=96 if c.ts else 64)
    ts_begin(k, c)
    k(f"""
    s_cmp_ge_u32 s2, 448
    s_cbranch_scc1 p1_end
    s_load_dwordx4 s[4:7], s[0:1], 0
    s_load_dwordx4 s[8:11], s[0:1], 16
    s_load_dwordx2 s[12:13], s[0:1], 96
    s_and_b32 s14, s2, 7
    s_lshr_b32 s15, s2, 3
    s_mul_i32 s16, s15, 37
    s_lshr_b32 s16, s16, 9
    s_mul_i32 s17, s16, 14
    s_sub_u32 s15, s15, s17          ; j
    s_lshl_b32 s16, s16, 3
    s_add_u32 s14, s14, s16          ; rt
    v_lshrrev_b32 v2, 6, v0
    v_and_b32 v1, 63, v0
    v_readfirstlane_b32 s18, v2      ; wave
    s_cmp_ge_u32 s15, 10
    s_cbranch_scc1 p1_stats
    v_and_b32 v3, 7, v1
    v_lshlrev_b32 v3, 4, v3
    v_lshlrev_b32 v4, 1, v1
    v_and_b32 v4, 32, v4             ; ((lane>>4)&1)<<5
    v_xor_b32 v3, v3, v4
    s_and_b32 s16, s18, 1
    s_lshl_b32 s16, s16, 6
    v_xor_b32 v3, s16, v3
    v_lshrrev_b32 v4, 3, v1
    s_movk_i32 s17, 1280
    v_mad_u32_u24 v2, v4, s17, v3
    s_lshl_b32 s19, s14, 6           ; s0
    s_lshl_b32 s16, s18, 4
    s_add_u32 s19, s19, s16
    s_mul_i32 s19, s19, 1280
    s_lshl_b32 s16, s15, 7
    s_add_u32 s19, s19, s16
    s_add_u32 s44, s19, {8*1280}
    s_lshl_b32 s45, s18, 11          ; w*2048
    s_lshl_b32 s46, s15, 6
    s_lshl_b32 s16, s18, 4
    s_add_u32 s46, s46, s16          ; ch0 = j*64+16w
    v_and_b32 v5, 15, v1
    v_lshlrev_b32 v6, 3, v5          ; (lane&15)*8
    s_lshl_b32 s47, s46, 3
    s_waitcnt lgkmcnt(0)""")
    k.srd(20, 4, NB); k.srd(24, 6, NB); k.srd(28, 8, NB); k.srd(32, 10, 640*8)
    k(f"""
    s_add_u32 m0, s45, 1024
    s_nop 0
    buffer_load_dwordx4 v2, s[24:27], s19 offen {c.ld_in} lds
    s_add_u32 m0, s45, 2048
    s_nop 0
    buffer_load_dwordx4 v2, s[24:27], s44 offen {c.ld_in} lds
    s_cmp_lg_u32 s18, 1
    s_cbranch_scc1 p1_nopre
    s_cmp_eq_u32 s14, 0
    s_cbranch_scc1 p1_zpre
    s_sub_u32 s16, s19, {24*1280}
    s_mov_b32 m0, 0
    s_nop 0
    buffer_load_dwordx4 v2, s[24:27], s16 offen {c.ld_in} lds
    s_branch p1_nopre
    p1_zpre:
    v_mov_b32 v8, 0
    v_mov_b32 v9, 0
    v_mov_b32 v10, 0
    v_mov_b32 v11, 0
    v_lshlrev_b32 v7, 4, v1
    ds_write_b128 v7, v[8:11]
    p1_nopre:
    buffer_load_dwordx2 v[8:9], v6, s[32:35], s47 offen
    s_add_u32 m0, s45, 9216
    s_nop 0
    buffer_load_dwordx4 v2, s[28:31], s19 offen {c.ld_in} lds
    s_add_u32 m0, s45, {9216+1024}
    s_nop 0
    buffer_load_dwordx4 v2, s[28:31], s44 offen {c.ld_in} lds
    s_add_u32 m0, s45, 17408
    s_nop 0
    buffer_load_dwordx4 v2, s[20:23], s19 offen {c.ld_in} lds
    s_add_u32 m0, s45, {17408+1024}
    s_nop 0
    buffer_load_dwordx4 v2, s[20:23], s44 offen {c.ld_in} lds""")
    k.srd_off(36, 12, c.WSB+KVP, NB); k.srd_off(40, 12, c.WSB+XT, NB)
    k(f"""
    v_lshrrev_b32 v10, 4, v1         ; g
    v_lshlrev_b32 v3, 11, v10        ; g*2048
    v_bfe_u32 v11, v1, 2, 2          ; r
    v_lshl_add_u32 v3, v11, 7, v3
    v_and_b32 v12, 3, v1
    v_lshl_add_u32 v3, v12, 3, v3
    v_lshrrev_b32 v11, 1, v11
    v_lshlrev_b32 v11, 5, v11        ; (r>>1)<<5
    v_and_b32 v12, 1, v10
    v_lshlrev_b32 v12, 6, v12
    v_xor_b32 v11, v11, v12
    s_lshl_b32 s16, s18, 5
    v_xor_b32 v11, s16, v11
    v_add_u32 v3, v3, v11
    v_xor_b32 v4, 64, v3
    v_lshlrev_b32 v5, 12, v5
    v_lshl_add_u32 v5, v10, 4, v5
    s_lshl_b32 s48, s46, 12
    s_lshl_b32 s16, s14, 7
    s_add_u32 s48, s48, s16
    s_waitcnt vmcnt(4)
    ; sk constants: v8=(sk0,sk1) v9=(sk2,sk3)
    v_alignbit_b32 v10, v8, v8, 16
    v_alignbit_b32 v11, v9, v9, 16
    v_and_b32 v12, 0xffff, v8
    s_mov_b32 s16, 0x07060100
    v_perm_b32 v13, v8, v9, s16
    v_and_b32 v14, 0xffff0000, v9
    s_waitcnt vmcnt(0) lgkmcnt(0)
    s_barrier
    ds_read_b64_tr_b16 v[16:17], v4 offset:512""")
    for i in range(4): k(f"ds_read_b64_tr_b16 v[{18+2*i}:{19+2*i}], v3 offset:{1024+512*i}")
    for i in range(4): k(f"ds_read_b64_tr_b16 v[{26+2*i}:{27+2*i}], v3 offset:{9216+512*i}")
    for i in range(4): k(f"ds_read_b64_tr_b16 v[{36+2*i}:{37+2*i}], v3 offset:{17408+512*i}")
    P = lambda m: f"v{18+m}"
    O = lambda t: f"v{44+t}"
    k("s_waitcnt lgkmcnt(8)")
    for m in range(8):
        k(f"v_dot2_f32_bf16 {O(2*m)}, {P(m-2)}, v14, 0")
        k(f"v_dot2_f32_bf16 {O(2*m+1)}, {P(m-1)}, v11, 0")
    for m in range(8):
        k(f"v_dot2_f32_bf16 {O(2*m)}, {P(m-1)}, v13, {O(2*m)}")
        k(f"v_dot2_f32_bf16 {O(2*m+1)}, {P(m)}, v10, {O(2*m+1)}")
    k("s_waitcnt lgkmcnt(0)")
    k(f"buffer_store_dwordx4 v[36:39], v5, s[40:43], s48 offen {c.st_mid}")
    k(f"buffer_store_dwordx4 v[40:43], v5, s[40:43], s48 offen offset:64 {c.st_mid}")
    for m in range(8):
        k(f"v_dot2_f32_bf16 {O(2*m)}, {P(m)}, v12, {O(2*m)}")
    for m in range(8):
        k(f"v_and_b32 v6, 0xffff0000, v{26+m}")
        k(f"v_lshlrev_b32 v7, 16, v{26+m}")
        k(f"v_mul_f32 {O(2*m+1)}, {O(2*m+1)}, v6")
        k(f"v_mul_f32 {O(2*m)}, {O(2*m)}, v7")
    for st in range(2):
        R = 16+4*st
        pa, pb = 2*st, 2*st+1
        k(f"v_cvt_pk_bf16_f32 v{R}, {O(pa)}, {O(pa+4)}")
        k(f"v_cvt_pk_bf16_f32 v{R+1}, {O(pa+8)}, {O(pa+12)}")
        k(f"v_cvt_pk_bf16_f32 v{R+2}, {O(pb)}, {O(pb+4)}")
        k(f"v_cvt_pk_bf16_f32 v{R+3}, {O(pb+8)}, {O(pb+12)}")
    k("s_nop 1")
    for st in range(2):
        R = 16+4*st
        k(f"v_permlane16_swap_b32 v{R}, v{R+2}")
        k(f"v_permlane16_swap_b32 v{R+1}, v{R+3}")
    k(f"""
    buffer_store_dwordx4 v[16:19], v5, s[36:39], s48 offen {c.st_mid}
    buffer_store_dwordx4 v[20:23], v5, s[36:39], s48 offen offset:64 {c.st_mid}""")
    ts_end(k, c, 0, 18)
    k(f"""
    s_endpgm
    p1_stats:
    s_lshl_b32 s19, s14, 6
    s_sub_u32 s16, s15, 10
    s_lshl_b32 s16, s16, 4
    s_add_u32 s19, s19, s16          ; row0
    s_mul_i32 s44, s19, 1280
    v_lshrrev_b32 v3, 4, v0
    v_and_b32 v4, 15, v0
    v_lshlrev_b32 v5, 4, v4
    s_movk_i32 s17, 1280
    v_mad_u32_u24 v2, v3, s17, v5
    s_waitcnt lgkmcnt(0)""")
    k.srd(20, 4, NB); k.srd_off(36, 12, c.WSB+STQ, S*4)
    for i in range(5): k(f"buffer_load_dwordx4 v[{8+4*i}:{11+4*i}], v2, s[20:23], s44 offen offset:{256*i} {c.ld_in}")
    k("""
    s_mov_b32 s16, 0x3f803f80
    v_lshlrev_b32 v3, 2, v3
    s_lshl_b32 s19, s19, 2""")
    for i in range(5):
        k(f"s_waitcnt vmcnt({4-i})")
        for r in range(4):
            k(f"v_dot2_f32_bf16 v{28+r}, v{8+4*i+r}, s16, {'0' if i==0 else 'v%d'%(28+r)}")
    k("""
    s_nop 2
    v_add_f32 v28, v28, v29
    v_add_f32 v30, v30, v31
    v_add_f32 v28, v28, v30""")
    for sh in (8,4,2,1):
        k(f"s_nop 1\nv_add_f32_dpp v28, v28, v28 row_ror:{sh} row_mask:0xf bank_mask:0xf")
    k(f"v_mul_f32 v28, {1.0/640!r}, v28")
    for r in range(4): k(f"v_mov_b32 v{32+r}, 0")
    for i in range(20):
        k(f"""
        v_and_b32 v6, 0xffff0000, v{8+i}
        v_lshlrev_b32 v7, 16, v{8+i}
        v_sub_f32 v6, v6, v28
        v_sub_f32 v7, v7, v28
        v_fmac_f32 v{32+(i&1)*2}, v6, v6
        v_fmac_f32 v{33+(i&1)*2}, v7, v7""")
    k("""
    v_add_f32 v32, v32, v33
    v_add_f32 v34, v34, v35
    v_add_f32 v32, v32, v34""")
    for sh in (8,4,2,1):
        k(f"s_nop 1\nv_add_f32_dpp v32, v32, v32 row_ror:{sh} row_mask:0xf bank_mask:0xf")
    k(f"""
    v_mov_b32 v33, {1e-5!r}
    v_fmac_f32 v33, {1.0/640!r}, v32
    v_rsq_f32 v33, v33
    v_cmp_eq_u32 vcc, 0, v4
    v_cvt_pk_bf16_f32 v34, v28, v33
    s_and_saveexec_b64 s[16:17], vcc
    buffer_store_dword v34, v3, s[36:39], s19 offen {c.st_mid}""")
    ts_end(k, c, 0, 18)
    k(f"""
    p1_end:
    s_endpgm""")
    return k

WSSZ = 0x1400000
def p2(c):
    NCONV=640; NWG=96; NWD=48; NT=NCONV+NWG+NWD
    k = Kern("p2_kernel", (NT,1,1), (256,1,1), lds=40960, vgpr=128, sgpr=96 if c.ts else 64)
    ts_begin(k, c)
    RS=8208; XR=4*RS; XS=1152
    k(f"""
    s_cmp_ge_u32 s2, {NT}
    s_cbranch_scc1 p2_end
    s_load_dwordx2 s[8:9], s[0:1], 96
    v_lshrrev_b32 v2, 6, v0
    v_and_b32 v1, 63, v0
    v_readfirstlane_b32 s3, v2       ; wave
    s_cmp_ge_u32 s2, {NCONV}
    s_cbranch_scc1 p2_side
    s_load_dwordx4 s[4:7], s[0:1], 32
    v_lshlrev_b32 v2, 4, v1          ; lane*16
    v_lshrrev_b32 v3, 1, v1
    v_lshlrev_b32 v3, 7, v3
    v_and_b32 v4, 1, v1
    v_lshl_add_u32 v3, v4, 5, v3
    s_lshl_b32 s20, s2, 12           ; ch*4096
    s_lshl_b32 s21, s3, 10
    s_add_u32 s22, s20, s21          ; K soffset
    s_add_u32 s21, s21, 32
    s_lshr_b32 s23, s3, 1
    s_lshl_b32 s23, s23, 6
    s_and_b32 s24, s3, 1
    s_lshl_b32 s24, s24, 4
    s_add_u32 s23, s23, s24
    s_add_u32 s23, s23, s20
    s_mul_i32 s24, s3, {XS}
    s_add_u32 s24, s24, {XR}
    v_lshrrev_b32 v4, 3, v0
    v_lshlrev_b32 v4, 7, v4
    v_and_b32 v5, 1, v0
    v_lshl_add_u32 v4, v5, 6, v4
    v_bfe_u32 v5, v0, 1, 2
    v_lshl_add_u32 v4, v5, 4, v4
    v_lshlrev_b32 v5, 5, v0          ; t*32
    s_lshl_b32 s25, s2, 1
    s_and_b32 s25, s25, 0xfffffffc
    s_waitcnt lgkmcnt(0)
    s_load_dword s26, s[6:7], s25""")
    k.srd(12, 4, NB); k.srd_off(16, 8, c.WSB, WSSZ)
    k(f"""
    s_mov_b32 m0, s21
    s_add_u32 s27, s20, {XT:#x}
    buffer_load_dwordx4 v2, s[12:15], s22 offen {c.ld_in} lds
    s_add_u32 m0, s24, 128
    s_add_u32 s23, s23, {KVP:#x}
    buffer_load_dwordx4 v3, s[16:19], s23 offen {c.ld_mid} lds
    s_mov_b32 s28, {STQ:#x}
    buffer_load_dwordx4 v[116:119], v4, s[16:19], s27 offen {c.ld_mid}
    buffer_load_dwordx4 v[120:123], v5, s[16:19], s28 offen
    buffer_load_dwordx4 v[124:127], v5, s[16:19], s28 offen offset:16
    v_mov_b32 v6, 0
    v_min_u32 v7, 31, v1
    v_lshlrev_b32 v7, 2, v7
    v_add_u32 v7, s24, v7
    ds_write_b32 v7, v6
    v_min_u32 v7, 7, v1
    v_lshlrev_b32 v7, 2, v7
    ds_write_b32 v7, v6
    v_lshrrev_b32 v7, 4, v1          ; q
    v_bfe_u32 v3, v1, 2, 2           ; r
    v_and_b32 v4, 3, v1              ; c
    v_sub_u32 v2, v4, v3
    v_lshlrev_b32 v2, 3, v2
    v_add_u32 v2, 224, v2
    v_lshlrev_b32 v8, 6, v7
    v_sub_u32 v2, v2, v8
    v_lshl_add_u32 v3, v4, 2, v3
    v_lshlrev_b32 v3, 3, v3
    v_lshl_add_u32 v3, v7, 4, v3
    s_add_u32 s29, s24, 8
    v_add_u32 v3, s29, v3
    s_mul_i32 s29, s3, {RS}
    v_lshlrev_b32 v4, 2, v4
    v_add_u32 v4, s29, v4
    s_mul_i32 s29, s3, {RS+4}
    s_mov_b32 m0, s29
    s_waitcnt vmcnt(3) lgkmcnt(0)
    s_barrier""")
    ACC = lambda cc: 8+4*cc
    KF = lambda t: 40+4*t
    free = [104,108,112]
    xreg = {}
    issued = []
    def ld_x(w):
        r = free.pop(0); xreg[w] = r
        k(f"ds_read_b64 v[{r}:{r+1}], v3 offset:{64*(w+1)}")
        k(f"ds_read_b64 v[{r+2}:{r+3}], v3 offset:{64*(w+1)+8}")
        issued.extend([("x",w)]*2)
    def ld_k(t):
        r = KF(t)
        k(f"ds_read_b64_tr_b16 v[{r}:{r+1}], v2 offset:{256*t+32}")
        k(f"ds_read_b64_tr_b16 v[{r+2}:{r+3}], v2 offset:{256*t}")
        issued.extend([("k",t)]*2)
    state = {"done": 0}
    def need(*tags):
        last = max(max(i for i,x in enumerate(issued) if x==t) for t in tags)
        if last+1 > state["done"]:
            n = len(issued)-1-last
            k(f"s_waitcnt lgkmcnt({min(n,15)})")
            state["done"] = len(issued)-min(n,15)
    def wr(cc):
        for r in range(4):
            k(f"ds_write_addtid_b32 v{ACC(cc)+r} offset:{1024*cc+256*r}")
            issued.append(("w",cc))
    ld_x(-1)
    for t in (15,13,11,9,7,5): ld_k(t)
    pend = [("k",3),("k",1),("x",0)]+[("k",t) for t in (14,12,10,8,6,4,2,0)]+[("x",1)]
    nxt = 2
    pendw = []
    for w in range(-1,15):
        cs = [cc for cc in range(7,-1,-1) if 0 <= 2*cc-w <= 15]
        for cc in cs:
            t = 2*cc-w
            need(("x",w),("k",t))
            src = "0" if w==-1 else f"v[{ACC(cc)}:{ACC(cc)+3}]"
            k(f"v_mfma_f32_16x16x32_bf16 v[{ACC(cc)}:{ACC(cc)+3}], v[{xreg[w]}:{xreg[w]+3}], v[{KF(t)}:{KF(t)+3}], {src}")
            lastm = len(k.lines)
            if cc==7: free.append(KF(t))
            for _ in range(2 if w<0 else 1):
                if pend:
                    a,b = pend.pop(0)
                    (ld_k if a=="k" else ld_x)(b)
            if not pend and nxt<=14 and free and w>=0:
                ld_x(nxt); nxt+=1
            if pendw and len(k.lines) - pendw[0][1] >= 8:
                wr(pendw.pop(0)[0])
        free.append(xreg[w])
        if w==0:
            k("s_barrier\nds_write_b32 v4, v6"); issued.append(("z",0))
        if w>=0 and w%2==0: pendw.append((w//2, lastm))
    while pendw:
        n = 8 - (len(k.lines) - pendw[0][1])
        if n > 0: k(f"s_nop {n-1}")
        wr(pendw.pop(0)[0])
    Y=lambda ph,i: 40+8*ph+i
    k(f"""
    v_lshlrev_b32 v2, 2, v0
    v_add_u32 v2, {XR+128}, v2
    s_add_u32 s27, s20, {HT:#x}
    s_bitcmp1_b32 s2, 0
    s_cselect_b32 s29, 0, 16
    s_lshl_b32 s26, s26, s29
    s_and_b32 s26, s26, 0xffff0000
    s_mov_b32 s30, s26
    s_mov_b32 s31, s26
    s_waitcnt lgkmcnt(0)
    s_barrier""")
    for ph in range(4): k(f"ds_read_b32 v{104+ph}, v2 offset:{XS*ph}")
    for ph in range(4):
        k(f"ds_read_b128 v[{Y(ph,0)}:{Y(ph,3)}], v5 offset:{RS*ph}")
        k(f"ds_read_b128 v[{Y(ph,4)}:{Y(ph,7)}], v5 offset:{RS*ph+16}")
    k("s_waitcnt vmcnt(0)")
    for i in range(4):
        k(f"v_lshlrev_b32 v{8+2*i}, 16, v{116+i}")
        k(f"v_and_b32 v{9+2*i}, 0xffff0000, v{116+i}")
    for i in range(8):
        k(f"v_lshlrev_b32 v{16+i}, 16, v{120+i}")
        k(f"v_and_b32 v{24+i}, 0xffff0000, v{120+i}")
    for i in range(0,8,2):
        k(f"v_pk_add_f32 v[{16+i}:{17+i}], v[{8+i}:{9+i}], v[{16+i}:{17+i}] neg_lo:[0,1] neg_hi:[0,1]")
    for i in range(0,8,2):
        k(f"v_pk_mul_f32 v[{16+i}:{17+i}], v[{16+i}:{17+i}], v[{24+i}:{25+i}]")
    k("s_waitcnt lgkmcnt(8)")
    for ph in range(4):
        k(f"v_lshlrev_b32 v{32+ph}, 16, v{104+ph}")
        k(f"v_and_b32 v{36+ph}, 0xffff0000, v{104+ph}")
    k("s_waitcnt lgkmcnt(6)")
    for i in range(0,8,2):
        k(f"v_pk_fma_f32 v[{32+i}:{33+i}], v[{32+i}:{33+i}], s[30:31], v[{Y(0,i)}:{Y(0,i+1)}]")
    for ph in range(1,4):
        k(f"s_waitcnt lgkmcnt({6-2*ph})")
        for i in range(0,8,2):
            k(f"v_pk_add_f32 v[{32+i}:{33+i}], v[{32+i}:{33+i}], v[{Y(ph,i)}:{Y(ph,i+1)}]")
    for i in range(0,8,2):
        k(f"v_pk_fma_f32 v[{8+i}:{9+i}], v[{16+i}:{17+i}], v[{32+i}:{33+i}], v[{8+i}:{9+i}]")
    for i in range(4):
        k(f"v_cvt_pk_bf16_f32 v{16+i}, v{8+2*i}, v{9+2*i}")
    k(f"""
    v_lshlrev_b32 v2, 4, v0
    buffer_store_dwordx4 v[16:19], v2, s[16:19], s27 offen {c.st_mid}""")
    ts_end(k, c, 1, 3)
    k(f"""
    s_endpgm
    p2_side:
    s_cmp_ge_u32 s2, {NCONV+NWG}
    s_cbranch_scc1 p2_wd
    s_sub_u32 s20, s2, {NCONV}
    s_and_b32 s21, s20, 7
    s_lshr_b32 s22, s20, 3           ; y
    s_lshr_b32 s23, s22, 1
    s_lshl_b32 s23, s23, 3
    s_add_u32 s21, s21, s23          ; combo
    s_and_b32 s22, s22, 1            ; half
    s_and_b32 s23, s21, 1            ; mat
    s_and_b32 s21, s21, 0xfffffffe
    s_add_u32 s21, s21, s22          ; slab
    s_lshl_b32 s24, s23, 3
    s_add_u32 s24, s24, 56
    s_load_dwordx2 s[4:5], s[0:1], s24
    v_lshrrev_b32 v3, 2, v1
    v_and_b32 v4, 3, v1
    v_lshlrev_b32 v2, 4, v4
    s_movk_i32 s25, 3072
    v_mad_u32_u24 v2, v3, s25, v2
    s_mul_i32 s25, s3, {160*3072}
    s_lshl_b32 s26, s21, 6
    s_add_u32 s25, s25, s26          ; soffset
    s_mul_i32 s26, s3, 10240
    s_waitcnt lgkmcnt(0)""")
    k.srd(12, 4, D*F*2); k.srd_off(16, 8, c.WSB, WSSZ)
    for i in range(10):
        k(f"""
        s_add_u32 m0, s26, {1024*i}
        s_add_u32 s27, s25, {16*3072*i}
        buffer_load_dwordx4 v2, s[12:15], s27 offen {c.ld_in} lds""")
    k(f"""
    v_lshrrev_b32 v5, 5, v1
    v_bfe_u32 v6, v1, 2, 2
    v_lshl_add_u32 v3, v5, 3, v6
    v_lshlrev_b32 v3, 6, v3
    v_bfe_u32 v6, v1, 4, 1
    v_lshl_add_u32 v3, v6, 5, v3
    v_lshl_add_u32 v3, v4, 3, v3
    v_add_u32 v3, s26, v3
    v_and_b32 v4, 15, v1
    v_lshlrev_b32 v4, 4, v4
    v_lshl_add_u32 v4, v6, 10, v4
    v_lshl_add_u32 v4, v5, 9, v4
    v_and_b32 v7, 31, v1
    v_lshlrev_b32 v7, 5, v7
    v_lshl_add_u32 v6, v5, 2, v7
    s_lshl_b32 s27, s3, 3
    v_add_u32 v6, s27, v6
    ; store soffset s28 = WC + ct*245760 + jA*1024 + mat*256 + 10w*6144 ; ct = slab/3 ; jA = 2*(slab%3)
    s_mul_i32 s27, s21, 43
    s_lshr_b32 s27, s27, 7           ; slab/3
    s_mul_i32 s28, s27, {245760-6*1024}
    s_lshl_b32 s29, s21, 11
    s_add_u32 s28, s28, s29
    s_lshl_b32 s29, s23, 8
    s_add_u32 s28, s28, s29
    s_mul_i32 s29, s3, 61440
    s_add_u32 s28, s28, s29
    s_add_u32 s28, s28, {WC:#x}""")
    for i in range(10):
        k(f"s_waitcnt vmcnt({9-i})")
        k(f"ds_read_b64_tr_b16 v[{8+4*i}:{9+4*i}], v3 offset:{1024*i}")
        k(f"ds_read_b64_tr_b16 v[{10+4*i}:{11+4*i}], v3 offset:{1024*i+256}")
        if i>=1:
            j=i-1
            k("s_waitcnt lgkmcnt(2)")
            for e in range(4):
                k(f"v_lshlrev_b32 v{48+8*j+2*e}, 16, v{8+4*j+e}")
                k(f"v_and_b32 v{49+8*j+2*e}, 0xffff0000, v{8+4*j+e}")
            for e in range(4):
                if j==1: k(f"v_pk_add_f32 v[{8+2*e}:{9+2*e}], v[{48+2*e}:{49+2*e}], v[{56+2*e}:{57+2*e}]")
                elif j>1: k(f"v_pk_add_f32 v[{8+2*e}:{9+2*e}], v[{8+2*e}:{9+2*e}], v[{48+8*j+2*e}:{49+8*j+2*e}]")
    k("s_waitcnt lgkmcnt(0)")
    j=9
    for e in range(4):
        k(f"v_lshlrev_b32 v{48+8*j+2*e}, 16, v{8+4*j+e}")
        k(f"v_and_b32 v{49+8*j+2*e}, 0xffff0000, v{8+4*j+e}")
    for e in range(4):
        k(f"v_pk_add_f32 v[{8+2*e}:{9+2*e}], v[{8+2*e}:{9+2*e}], v[{48+8*j+2*e}:{49+8*j+2*e}]")
    k(f"""
    v_pk_add_f32 v[8:9], v[8:9], v[10:11]
    v_pk_add_f32 v[12:13], v[12:13], v[14:15]
    v_pk_add_f32 v[8:9], v[8:9], v[12:13]
    v_add_f32 v8, v8, v9
    s_barrier
    ds_write_b32 v6, v8
    s_waitcnt lgkmcnt(0)
    s_barrier
    ds_read_b128 v[8:11], v7
    ds_read_b128 v[12:15], v7 offset:16
    s_waitcnt lgkmcnt(0)
    v_pk_add_f32 v[8:9], v[8:9], v[10:11]
    v_pk_add_f32 v[12:13], v[12:13], v[14:15]
    v_pk_add_f32 v[8:9], v[8:9], v[12:13]
    v_add_f32 v8, v8, v9
    v_mul_f32 v8, {-1.0/640!r}, v8
    v_mov_b32 v9, v8""")
    for i in range(10):
        for e in range(4):
            k(f"v_pk_add_f32 v[{48+8*i+2*e}:{49+8*i+2*e}], v[{48+8*i+2*e}:{49+8*i+2*e}], v[8:9]")
        R = 12+4*(i%8)
        for e in range(4):
            k(f"v_cvt_pk_bf16_f32 v{R+e}, v{48+8*i+2*e}, v{49+8*i+2*e}")
        k(f"buffer_store_dwordx4 v[{R}:{R+3}], v4, s[16:19], s28 offen {c.st_mid}")
        if i<9: k("s_add_u32 s28, s28, 6144")
    ts_end(k, c, 1, 3)
    k(f"""
    s_endpgm
    p2_wd:
    s_load_dwordx2 s[4:5], s[0:1], 72
    s_sub_u32 s20, s2, {NCONV+NWG}   ; kstep32
    s_mul_i32 s26, s3, 10240
    s_mul_i32 s25, s20, 40960
    s_add_u32 s25, s25, s26
    v_lshlrev_b32 v2, 4, v1
    v_lshrrev_b32 v3, 4, v1""")
    for i in range(10):
        k(f"""
        v_add_u32 v4, {4*i}, v3
        v_mul_u32_u24 v4, 205, v4
        v_lshrrev_b32 v4, 10, v4
        v_lshlrev_b32 v4, 5, v4
        v_xor_b32 v{8+i}, v4, v2""")
    k("s_waitcnt lgkmcnt(0)")
    k.srd(12, 4, D*F*2); k.srd_off(16, 8, c.WSB, WSSZ)
    for i in range(10):
        k(f"""
        s_add_u32 m0, s26, {1024*i}
        s_add_u32 s27, s25, {1024*i}
        buffer_load_dwordx4 v{8+i}, s[12:15], s27 offen {c.ld_in} lds""")
    k(f"""
    v_bfe_u32 v5, v1, 2, 2
    v_and_b32 v6, 1, v3
    v_lshl_add_u32 v5, v6, 2, v5     ; row&7
    v_lshrrev_b32 v6, 5, v1
    v_lshl_add_u32 v6, v6, 4, v5     ; row
    s_movk_i32 s27, 1280
    v_mul_u32_u24 v4, s27, v6
    v_and_b32 v6, 3, v1
    v_mul_u32_u24 v6, 40, v6
    s_mul_i32 s27, s3, 320
    v_add3_u32 v4, v4, v6, s27
    v_lshlrev_b32 v5, 5, v5""")
    for i in range(10):
        k(f"v_add_u32 v6, {160*(i//5)+8*(i%5)}, v4\nv_xor_b32 v{8+i}, v6, v5")
    k(f"""
    s_mul_i32 s28, s20, 5120
    s_mul_i32 s27, s3, {2*245760}
    s_add_u32 s28, s28, s27
    s_add_u32 s28, s28, {WDP:#x}
    s_add_u32 s29, s28, 245760
    s_add_u32 s30, s28, 4096
    s_add_u32 s31, s29, 4096
    s_waitcnt vmcnt(0)
    s_barrier""")
    for i in range(10):
        R = 20+4*i
        k(f"ds_read_b64_tr_b16 v[{R}:{R+1}], v{8+i}")
        k(f"ds_read_b64_tr_b16 v[{R+2}:{R+3}], v{8+i} offset:10240")
    for i in range(10):
        R = 20+4*i
        n = 2*(9-i)
        j = i%5
        so = (28 if i<5 else 29) if j<4 else (30 if i<5 else 31)
        k(f"""
        s_waitcnt lgkmcnt({min(n,15)})
        buffer_store_dwordx4 v[{R}:{R+3}], v2, s[16:19], s{so} offen offset:{1024*(j&3)} {c.st_mid}""")
    ts_end(k, c, 1, 3)
    k("""
    p2_end:
    s_endpgm""")
    return k

def p3(c):
    NS = getattr(c, "p3_ns", 7)
    LDR = getattr(c, "p3_ldr", True)
    SL = 20480
    NST = 20
    k = Kern("p3_kernel", (256,1,1), (512 if LDR else 256,1,1), lds=NS*SL, vgpr=160, sgpr=96)
    ts_begin(k, c)
    k(f"""
    s_cmp_ge_u32 s2, 256
    s_cbranch_scc1 p3_end
    s_load_dwordx2 s[4:5], s[0:1], 96
    v_lshrrev_b32 v2, 6, v0
    v_and_b32 v1, 63, v0
    v_readfirstlane_b32 s3, v2       ; wave
    s_and_b32 s12, s2, 1
    s_lshl_b32 s12, s12, 3
    s_bfe_u32 s13, s2, 0x30003
    s_add_u32 s12, s12, s13          ; rb
    s_bfe_u32 s13, s2, 0x20001
    s_lshl_b32 s13, s13, 2
    s_lshr_b32 s14, s2, 6
    s_add_u32 s13, s13, s14          ; ct
    s_and_b32 s18, s3, 3
    s_mul_i32 s16, s18, 3072
    s_lshl_b32 s17, s18, 11
    s_add_u32 s17, s17, 12288
    s_mul_i32 s14, s13, 245760
    s_add_u32 s14, s14, s16
    s_add_u32 s14, s14, {WC:#x}      ; A soffset
    s_lshl_b32 s15, s12, 8
    s_lshl_b32 s19, s18, 15
    s_add_u32 s15, s15, s19
    s_add_u32 s15, s15, {HT:#x}      ; B soffset
    v_lshlrev_b32 v2, 4, v1
    v_lshrrev_b32 v5, 4, v1          ; q
    v_lshlrev_b32 v3, 6, v5
    v_and_b32 v4, 0xf0, v2
    v_xor_b32 v3, v3, v4
    v_lshl_add_u32 v3, v5, 12, v3    ; B voffset 0
    v_add_u32 v4, {16384-1024}, v3   ; B voffset 1""")
    def dma(st):
        slot = st % NS
        return [f"s_add_u32 m0, s16, {slot*SL}\ns_nop 0\nbuffer_load_dwordx4 v2, s[8:11], s14 offen {c.ld_mid} lds",
                f"buffer_load_dwordx4 v2, s[8:11], s14 offen offset:1024 {c.ld_mid} lds",
                f"buffer_load_dwordx4 v2, s[8:11], s14 offen offset:2048 {c.ld_mid} lds\ns_add_u32 s14, s14, 12288",
                f"s_add_u32 m0, s17, {slot*SL}\ns_nop 0\nbuffer_load_dwordx4 v3, s[8:11], s15 offen {c.ld_mid} lds",
                f"buffer_load_dwordx4 v4, s[8:11], s15 offen offset:1024 {c.ld_mid} lds\ns_add_u32 s15, s15, 131072"]
    if LDR:
        k("s_cmp_lt_u32 s3, 4\ns_cbranch_scc1 p3_cons")
        k("s_waitcnt lgkmcnt(0)")
        k.srd_off(8, 4, c.WSB, WSSZ)
        for st in range(NS):
            for x in dma(st): k(x)
        k(f"s_waitcnt vmcnt({5*(NS-1)})\ns_barrier")
        for i in range(NST-1):
            infl = min(NST-1, i+NS-1) - (i+1)
            k(f"s_waitcnt vmcnt({5*infl})\ns_barrier")
            if i+NS < NST and not getattr(c,"p3_nodma",False):
                for x in dma(i+NS): k(x)
        ts_end(k, c, 2, 3)
        k("s_endpgm\np3_cons:")
    else:
        k("s_waitcnt lgkmcnt(0)")
        k.srd_off(8, 4, c.WSB, WSSZ)
        for st in range(NS):
            for x in dma(st): k(x)
    NG = (NS+2)//3
    VA = lambda g: 6+3*g
    VB = lambda g,b: 7+3*g+b
    k(f"""
    s_and_b32 s20, s3, 1             ; sw
    s_lshr_b32 s21, s3, 1            ; fw
    s_mul_i32 s22, s21, 3072
    v_add_u32 v6, s22, v2            ; A base
    v_bfe_u32 v16, v1, 2, 2          ; r
    v_lshrrev_b32 v17, 5, v1         ; h
    v_lshl_add_u32 v7, v17, 3, v16
    v_lshlrev_b32 v7, 8, v7          ; row*256
    s_lshl_b32 s22, s20, 1
    v_xor_b32 v16, s22, v16
    v_lshl_add_u32 v7, v16, 6, v7
    v_and_b32 v16, 1, v5
    v_lshl_add_u32 v7, v16, 5, v7
    v_and_b32 v17, 3, v1
    v_lshl_add_u32 v7, v17, 3, v7
    v_add_u32 v7, 12288, v7
    v_xor_b32 v8, 64, v7""")
    for g in range(1, NG):
        k(f"""
        v_add_u32 v{VA(g)}, {3*SL*g}, v6
        v_add_u32 v{VB(g,0)}, {3*SL*g}, v7
        v_add_u32 v{VB(g,1)}, {3*SL*g}, v8""")
    k(f"""
    v_and_b32 v61, 0xf0, v2
    v_lshl_add_u32 v61, v16, 10, v61
    v_lshrrev_b32 v17, 5, v1
    v_lshl_add_u32 v61, v17, 8, v61
    s_lshl_b32 s22, s12, 1
    s_add_u32 s22, s22, s20
    s_mul_i32 s22, s22, 48
    s_mul_i32 s23, s13, 3
    s_add_u32 s22, s22, s23
    s_lshl_b32 s22, s22, 12
    s_add_u32 s22, s22, {HH:#x}
    s_mul_i32 s23, s21, 3""")
    for t in range(3):
        k(f"""
        s_add_u32 s24, s23, {t}
        s_lshr_b32 s25, s24, 1
        s_lshl_b32 s25, s25, 12
        s_and_b32 s24, s24, 1
        s_lshl_b32 s24, s24, 9
        s_add_u32 s24, s24, s25
        s_add_u32 s{28+t}, s24, s22""")
    k("""
    s_mov_b32 s26, 0x3f803f80
    v_mov_b32 v16, 0
    v_mov_b32 v17, 0
    v_mov_b32 v18, 0
    v_mov_b32 v19, 0""")
    if LDR:
        k("s_waitcnt lgkmcnt(0)")
        k.srd_off(8, 4, c.WSB, WSSZ)
    FA = lambda p,t: 20+20*p+4*t
    FB = lambda p,b: 32+20*p+4*b
    ACC = lambda t,b: 64+16*(2*t+b)
    def reads(st, kk):
        slot = st % NS; g = slot//3; o = (slot%3)*SL; p = kk
        ra = lambda t: f"ds_read_b128 v[{FA(p,t)}:{FA(p,t)+3}], v{VA(g)} offset:{o+kk*6144+t*1024}"
        rb = lambda b,u: f"ds_read_b64_tr_b16 v[{FB(p,b)+2*u}:{FB(p,b)+2*u+1}], v{VB(g,b)} offset:{o+kk*4096+u*1024}"
        return [[ra(0), rb(0,0), rb(0,1)], [ra(1), rb(1,0), rb(1,1)], [ra(2)]]
    order = [(0,0),(1,0),(0,1),(1,1),(2,0),(2,1)]
    def stats(p):
        r = FB(p,0)
        return [f"v_dot2_f32_bf16 v16, v{r}, s26, v16\nv_dot2_f32_bf16 v17, v{r}, v{r}, v17\nv_dot2_f32_bf16 v18, v{r+1}, s26, v18\nv_dot2_f32_bf16 v19, v{r+1}, v{r+1}, v19",
                f"v_dot2_f32_bf16 v16, v{r+2}, s26, v16\nv_dot2_f32_bf16 v17, v{r+2}, v{r+2}, v17\nv_dot2_f32_bf16 v18, v{r+3}, s26, v18\nv_dot2_f32_bf16 v19, v{r+3}, v{r+3}, v19"]
    k("""
    s_lshl_b32 s22, s21, 6""")
    for g in range(NG):
        k(f"v_xor_b32 v{VB(g,0)}, s22, v{VB(g,0)}\nv_xor_b32 v{VB(g,1)}, s22, v{VB(g,1)}")
    k("""
    s_lshl_b32 s22, s21, 11
    v_add_u32 v60, s22, v61
    v_xor_b32 v61, 2048, v60""")
    if not LDR: k(f"s_waitcnt vmcnt({5*(NS-1)})")
    k("s_barrier")
    ts_mark(k, c, 0)
    for grp in reads(0,0):
        for x in grp: k(x)
    for st in range(NST):
        for kk in range(2):
            p = kk
            if kk==0:
                k("s_waitcnt lgkmcnt(0)")
                nx = reads(st,1)
            else:
                nx = reads(st+1,0) if st+1<NST else [[],[],[]]
            fill = [list(nx[0]), list(nx[1]), list(nx[2]), [], [], []]
            s0, s1 = stats(p)
            if not getattr(c,"p3_nostat",False): fill[2].append(s0); fill[3].append(s1)
            if getattr(c,"p3_noread",False) and st>0: fill = [[] for _ in range(6)]
            if not LDR:
                if kk==1 and st+NS<NST:
                    d = dma(st+NS)
                    fill[2].append(d[0]); fill[3].append(d[1]); fill[4].append(d[2])
                if kk==0 and st>=1 and st-1+NS<NST:
                    d = dma(st-1+NS)
                    fill[3].append(d[3]); fill[4].append(d[4])
            for i,(t,b) in enumerate(order):
                src = "0" if (st==0 and kk==0) else f"v[{ACC(t,b)}:{ACC(t,b)+15}]"
                if not (getattr(c,"p3_nomfma",False) and st>0): k(f"v_mfma_f32_32x32x16_bf16 v[{ACC(t,b)}:{ACC(t,b)+15}], v[{FA(p,t)}:{FA(p,t)+3}], v[{FB(p,b)}:{FB(p,b)+3}], {src}")
                for x in fill[i]: k(x)
            if kk==0:
                if st+1<NST:
                    if LDR: k("s_waitcnt lgkmcnt(0)\ns_barrier")
                    else:
                        infl = min(NST-1, st+NS-1) - (st+1)
                        k(f"s_waitcnt vmcnt({5*infl}) lgkmcnt(0)\ns_barrier")
                else:
                    k("s_waitcnt lgkmcnt(0)")
    ts_mark(k, c, 1)
    k(f"""
    s_nop 2
    v_add_f32 v16, v16, v18
    v_add_f32 v17, v17, v19
    v_mov_b32 v18, v16
    v_mov_b32 v19, v17
    s_nop 1
    v_permlane32_swap_b32 v16, v18
    v_permlane32_swap_b32 v17, v19
    v_add_f32 v16, v16, v18
    v_add_f32 v17, v17, v19
    v_mul_f32 v16, {1.0/640!r}, v16
    v_mul_f32 v17, {1.0/640!r}, v17
    v_fma_f32 v17, -v16, v16, v17
    v_max_f32 v17, 0, v17
    v_add_f32 v17, {1e-5!r}, v17
    v_rcp_f32 v17, v17
    v_and_b32 v18, 31, v1
    v_lshlrev_b32 v18, 2, v18
    s_lshl_b32 s22, s12, 2
    s_lshl_b32 s23, s20, 1
    s_add_u32 s22, s22, s23
    s_add_u32 s22, s22, s21
    s_lshl_b32 s22, s22, 7
    s_add_u32 s22, s22, {R2:#x}
    s_cmp_lg_u32 s13, 0
    s_cbranch_scc1 p3_nost
    buffer_store_dword v17, v18, s[8:11], s22 offen {c.st_mid}
    p3_nost:""")
    for i,(t,b) in enumerate(order):
        a = ACC(t,b)
        for j in range(0,8,2):
            k(f"v_pk_mul_f32 v[{a+j}:{a+j+1}], v[{a+j}:{a+j+1}], v[{a+8+j}:{a+9+j}]")
        R = 20+4*i
        for j in range(4):
            k(f"v_cvt_pk_bf16_f32 v{R+j}, v{a+2*j}, v{a+2*j+1}")
        k(f"buffer_store_dwordx4 v[{R}:{R+3}], v{60+b}, s[8:11], s{28+t} offen {c.st_mid}")
    ts_end(k, c, 2, 3)
    k("""
    p3_end:
    s_endpgm""")
    return k


def p4(c):
    k = Kern("p4_kernel", (256,1,1), (256,1,1), lds=71680, vgpr=256, sgpr=96 if c.ts else 64)
    ts_begin(k, c)
    HO = 61440
    NK = 12; NSL = 4
    IL = getattr(c, "p4_il", False); KS = 4 if IL else 1
    MAP = {0: """s_and_b32 s12, s2, 7
    s_lshl_b32 s12, s12, 2
    s_bfe_u32 s13, s2, 0x20003
    s_add_u32 s12, s12, s13          ; st
    s_lshr_b32 s13, s2, 5            ; ct""",
           1: """s_and_b32 s12, s2, 3
    s_lshl_b32 s12, s12, 3
    s_bfe_u32 s13, s2, 0x30003
    s_add_u32 s12, s12, s13          ; st
    s_bfe_u32 s13, s2, 0x10002
    s_lshl_b32 s13, s13, 2
    s_lshr_b32 s14, s2, 6
    s_add_u32 s13, s13, s14          ; ct""",
           2: """s_and_b32 s13, s2, 7
    s_lshr_b32 s12, s2, 3"""}[getattr(c, "p4_map", 0)]
    k(f"""
    s_cmp_ge_u32 s2, 256
    s_cbranch_scc1 p4_end
    s_load_dwordx2 s[4:5], s[0:1], 96
    s_load_dwordx2 s[6:7], s[0:1], 80
    v_lshrrev_b32 v2, 6, v0
    v_and_b32 v1, 63, v0
    v_readfirstlane_b32 s3, v2       ; wave
    {MAP}
    s_mul_i32 s16, s3, {1 if IL else 12}
    s_mul_i32 s14, s12, 48
    s_add_u32 s14, s14, s16
    s_lshl_b32 s14, s14, 12
    s_add_u32 s14, s14, {HH:#x}
    s_mul_i32 s15, s13, 48
    s_add_u32 s15, s15, s16
    s_mul_i32 s15, s15, 5120
    s_add_u32 s15, s15, {WDP:#x}
    s_add_u32 s17, s15, 4096
    v_lshlrev_b32 v2, 4, v1          ; lane*16""")
    for b in range(4):
        k(f"""
        s_add_u32 s16, s3, {1+b}
        s_and_b32 s{20+b}, s16, 3
        s_lshl_b32 s16, s{20+b}, 10
        v_add_u32 v{4+b}, s16, v2""")
    k("s_waitcnt lgkmcnt(0)")
    k.srd_off(8, 4, c.WSB, WSSZ)
    W = lambda p,j: 16+36*p+4*j
    H = lambda p,b: 36+36*p+4*b
    ACC = lambda b,j: 160+20*b+4*j
    issued = []
    st = {"done": 0}
    def need(*tags):
        last = max(issued.index(t) for t in tags)
        if last+1 > st["done"]:
            k(f"s_waitcnt vmcnt({len(issued)-1-last})")
            st["done"] = last+1
    def ldW(i, j):
        p = i % NSL
        if j < 4: k(f"buffer_load_dwordx4 v[{W(p,j)}:{W(p,j)+3}], v2, s[8:11], s15 offen offset:{1024*j} {c.ld_mid}")
        else: k(f"buffer_load_dwordx4 v[{W(p,j)}:{W(p,j)+3}], v2, s[8:11], s17 offen {c.ld_mid}\ns_add_u32 s15, s15, {5120*KS}\ns_add_u32 s17, s17, {5120*KS}")
        issued.append(("W",i,j))
    def ldH(i, b):
        p = i % NSL
        k(f"buffer_load_dwordx4 v[{H(p,b)}:{H(p,b)+3}], v{4+b}, s[8:11], s14 offen {c.ld_mid}")
        if b == 3: k(f"s_add_u32 s14, s14, {4096*KS}")
        issued.append(("H",i,b))
    for i in range(NSL):
        ldW(i,0); ldH(i,0)
        for j in range(1,5): ldW(i,j)
        for b in range(1,4): ldH(i,b)
    k(f"""
    v_lshrrev_b32 v8, 3, v1
    v_lshlrev_b32 v8, 12, v8
    v_and_b32 v9, 0x70, v2
    v_add_u32 v8, v8, v9
    s_mul_i32 s24, s13, {80*4096}
    s_lshl_b32 s25, s12, 7
    s_add_u32 s24, s24, s25
    s_add_u32 s24, s24, {HT:#x}""")
    for i in range(3):
        k(f"""
        s_add_u32 s25, s3, {4*i}
        s_min_u32 s25, s25, 9
        s_lshl_b32 s26, s25, 10
        s_add_u32 m0, s26, {HO}
        s_lshl_b32 s25, s25, 15
        s_add_u32 s25, s25, s24
        buffer_load_dwordx4 v8, s[8:11], s25 offen {c.ld_mid} lds""")
        issued.append(("T",i))
    k(f"""
    v_and_b32 v9, 15, v1
    v_lshlrev_b32 v10, 2, v9
    s_lshl_b32 s24, s12, 2
    s_add_u32 s24, s24, s3
    s_lshl_b32 s25, s24, 6
    s_add_u32 s25, s25, {R2:#x}
    buffer_load_dword v3, v10, s[8:11], s25 offen {c.ld_mid}""")
    issued.append(("R",))
    k(f"""
    s_movk_i32 s25, 1280
    v_mul_u32_u24 v9, s25, v9
    v_lshrrev_b32 v10, 4, v1         ; q
    v_mad_u32_u24 v9, v10, 40, v9
    s_mul_i32 s24, s24, {16*1280}
    s_mul_i32 s25, s13, 160
    s_add_u32 s24, s24, s25
    v_mul_u32_u24 v10, 20, v10
    v_bfe_u32 v11, v1, 2, 2
    v_add_u32 v10, v10, v11
    v_lshlrev_b32 v10, 7, v10
    v_and_b32 v11, 3, v1
    v_lshl_add_u32 v10, v11, 3, v10
    s_lshl_b32 s25, s3, 5
    s_add_u32 s25, s25, {HO}
    v_add_u32 v10, s25, v10""")
    for b in range(3):
        k(f"""
        s_mul_i32 s25, s{20+b}, 15360
        s_add_u32 s25, s25, {5120*b}
        v_add_u32 v{12+b}, s25, v2""")
    k(f"""
    s_mul_i32 s25, s3, 15360
    v_add_u32 v15, s25, v2""")
    k.srd(28, 6, NB)
    pw = []
    for i in range(NK):
        p = i % NSL
        for b in range(4):
            for j in range(5):
                need(("W",i,j), ("H",i,b))
                a = ACC(b,j)
                src = "0" if i==0 else f"v[{a}:{a+3}]"
                if not (getattr(c,"p4_nomfma",False) and 0<i<NK-1): k(f"v_mfma_f32_16x16x32_bf16 v[{a}:{a+3}], v[{W(p,j)}:{W(p,j)+3}], v[{H(p,b)}:{H(p,b)+3}], {src}")
                if i+NSL < NK:
                    if b==3: ldW(i+NSL, j)
                    if j==4: ldH(i+NSL, b)
                if i==NK-1:
                    if b<3: pw.append((b,j,len(k.lines)))
                    if pw and len(k.lines)-pw[0][2] >= 8:
                        bb,jj,_ = pw.pop(0)
                        k(f"ds_write_b128 v{12+bb}, v[{ACC(bb,jj)}:{ACC(bb,jj)+3}] offset:{1024*jj}")
                        if pw and len(k.lines)-pw[0][2] >= 8 and b==3:
                            bb,jj,_ = pw.pop(0)
                            k(f"ds_write_b128 v{12+bb}, v[{ACC(bb,jj)}:{ACC(bb,jj)+3}] offset:{1024*jj}")
    while pw:
        bb,jj,_ = pw.pop(0)
        k(f"ds_write_b128 v{12+bb}, v[{ACC(bb,jj)}:{ACC(bb,jj)+3}] offset:{1024*jj}")
    ts_mark(k, c, 0)
    k("s_waitcnt vmcnt(0) lgkmcnt(0)\ns_barrier")
    ts_mark(k, c, 1)
    for j in range(5):
        k(f"ds_read_b64_tr_b16 v[{76+2*j}:{77+2*j}], v10 offset:{512*j}")
    for b in range(3):
        for j in range(5):
            k(f"ds_read_b128 v[{16+20*b+4*j}:{19+20*b+4*j}], v15 offset:{5120*b+1024*j}")
    k("s_waitcnt lgkmcnt(15)")
    for j in range(10):
        k(f"v_lshlrev_b32 v{88+2*j}, 16, v{76+j}\nv_and_b32 v{89+2*j}, 0xffff0000, v{76+j}")
    A = ACC(3,0)
    for b in range(3):
        for j in range(5):
            k(f"s_waitcnt lgkmcnt({14-5*b-j})")
            for e in (0,2):
                r = 4*j+e
                k(f"v_pk_add_f32 v[{A+r}:{A+r+1}], v[{A+r}:{A+r+1}], v[{16+20*b+r}:{17+20*b+r}]")
    for r in range(0,20,2):
        k(f"v_pk_fma_f32 v[{88+r}:{89+r}], v[{A+r}:{A+r+1}], v[2:3], v[{88+r}:{89+r}] op_sel:[0,1,0] op_sel_hi:[1,1,1]")
    for r in range(10):
        k(f"v_cvt_pk_bf16_f32 v{16+r}, v{88+2*r}, v{89+2*r}")
    k(f"""
    buffer_store_dwordx4 v[16:19], v9, s[28:31], s24 offen {c.st_out}
    buffer_store_dwordx4 v[20:23], v9, s[28:31], s24 offen offset:16 {c.st_out}
    buffer_store_dwordx2 v[24:25], v9, s[28:31], s24 offen offset:32 {c.st_out}""")
    ts_end(k, c, 3, 3)
    k("""
    p4_end:
    s_endpgm""")
    return k
```

```python
import re
def regs(tok):
    tok = tok.strip()
    m = re.fullmatch(r"([vas])\[(\d+):(\d+)\]", tok)
    if m: return {(m.group(1), i) for i in range(int(m.group(2)), int(m.group(3))+1)}
    m = re.fullmatch(r"([vas])(\d+)", tok)
    if m: return {(m.group(1), int(m.group(2)))}
    if tok == "vcc": return {("s","vcc")}
    if tok == "exec": return {("s","exec")}
    if tok == "m0": return {("s","m0")}
    return set()
TRANS = ("v_exp_","v_log_","v_rcp_","v_rsq_","v_sqrt_","v_sin_","v_cos_")
def parse(line):
    line = line.split(";")[0].strip()
    if not line or line.endswith(":") or line.startswith("."): return None
    p = line.split(None, 1)
    op = p[0]; rest = p[1] if len(p) > 1 else ""
    ops = [o.strip() for o in rest.split(",")]
    toks = []
    for o in ops:
        toks.append(o.split()[0] if o else "")
    mods = rest
    d = dict(op=op, toks=toks, mods=mods, line=line)
    dst=set(); src=set()
    isv = op.startswith("v_")
    if op.startswith("v_mfma"):
        dst = regs(toks[0]); d["A"]=regs(toks[1]); d["B"]=regs(toks[2]); d["C"]=regs(toks[3]); src = d["A"]|d["B"]|d["C"]
        d["kind"]="mfma"; d["passes"] = 8 if "32x32x16" in op else 4
    elif op.startswith("v_cmp"):
        dst = regs(toks[0]); src = set().union(*[regs(t) for t in toks[1:]]); d["kind"]="valu"
        if op.startswith("v_cmpx"): dst |= {("s","exec")}
    elif "permlane" in op and "swap" in op:
        dst = regs(toks[0])|regs(toks[1]); src = set(dst); d["kind"]="valu"
    elif isv:
        dst = regs(toks[0]); src = set().union(*[regs(t) for t in toks[1:]]) if len(toks)>1 else set()
        if op.startswith(("v_add_co","v_sub_co","v_addc","v_subb")): dst |= regs(toks[1])
        if op.startswith(("v_fmac","v_mac","v_dot2c","v_writelane")): src |= dst
        if op.startswith("v_cndmask") and len(toks)==3: src |= {("s","vcc")}
        d["kind"]="valu"
    elif op.startswith("buffer_load") or op.startswith("global_load"):
        d["kind"]="vmem"
        if " lds" in mods or "_lds_" in op:
            src = set().union(*[regs(t) for t in toks]) | {("s","m0")}
        else:
            dst = regs(toks[0]); src = set().union(*[regs(t) for t in toks[1:]])
    elif op.startswith(("buffer_store","global_store","buffer_atomic","global_atomic")):
        d["kind"]="vmem"; src = set().union(*[regs(t) for t in toks])
        d["wide"] = ("x4" in op or "x3" in op)
        d["data"] = regs(toks[0]) if op.startswith("buffer") else regs(toks[1])
    elif op.startswith("ds_"):
        d["kind"]="ds"
        if op.startswith(("ds_read","ds_bpermute","ds_permute","ds_swizzle")) or "_rtn" in op:
            dst = regs(toks[0]); src = set().union(*[regs(t) for t in toks[1:]]) if len(toks)>1 else set()
        else:
            src = set().union(*[regs(t) for t in toks])
        if "addtid" in op: src |= {("s","m0")}
    elif op.startswith("s_"):
        d["kind"]="salu"
        if op.startswith(("s_cmp","s_cbranch","s_branch","s_waitcnt","s_nop","s_barrier","s_endpgm","s_setprio","s_sleep")):
            src = set().union(*[regs(t) for t in toks]) if toks else set()
        else:
            dst = regs(toks[0]); src = set().union(*[regs(t) for t in toks[1:]]) if len(toks)>1 else set()
            if "saveexec" in op: dst |= {("s","exec")}
    else:
        d["kind"]="?"
    d["dst"]=dst; d["src"]=src
    d["dpp"] = ("_dpp" in op) or ("row_" in mods) or ("quad_perm" in mods) or ("wave_" in mods)
    return d
def check(lines, name=""):
    ins = [x for x in (parse(l) for l in lines) if x]
    nw = 0
    for i, c in enumerate(ins):
        dist = 0
        for j in range(i-1, max(-1, i-25), -1):
            p = ins[j]
            need = 0; why = ""
            vd = {r for r in p["dst"] if r[0] in "va"}; sd = {r for r in p["dst"] if r[0]=="s"}
            ck = c["kind"]
            if p["kind"]=="valu":
                if ck=="mfma" and vd & c["src"]: need,why = 2,"valu->mfma"
                if ck=="valu":
                    if ("permlane" in c["op"] or c["dpp"]) and vd & c["src"]: need,why = max(need,2),"valu->permlane/dpp"
                    if c["op"].startswith(("v_readfirstlane","v_readlane")) and vd & c["src"]: need,why = max(need,1),"valu->readlane"
                    if p["op"].startswith(TRANS) and vd & c["src"] and not c["op"].startswith(TRANS): need,why=max(need,1),"trans->use"
                    if sd & c["src"] : need,why=max(need,2),"valu sgpr->valu"
                    if ("s","exec") in sd and c["dpp"]: need,why=max(need,5),"valu exec->dpp"
                if p["op"].startswith("v_dot") and (vd & (c["src"]|c["dst"])):
                    same = c["op"]==p["op"]
                    if same:
                        ab = regs(c["toks"][1])|regs(c["toks"][2])
                        if vd & ab: need,why=max(need,3),"dot->dot AB"
                    else: need,why=max(need,3),"dot->other"
                if ck=="vmem" and sd & c["src"]: need,why=max(need,5),"valu sgpr->vmem"
                if ("s","exec") in sd and ck=="mfma": need,why=max(need,4),"exec->mfma"
            if p["kind"]=="mfma":
                ps = p["passes"]
                if ck=="mfma":
                    if vd & (c["A"]|c["B"]): need,why = {4:8,8:12}[ps],"mfma->mfma AB"
                    elif vd & c["C"] and not (vd==c["C"] and c["passes"]==ps): need,why={4:6,8:10}[ps],"mfma->mfma C partial"
                elif ck in("valu","vmem","ds") and vd & (c["src"]|c["dst"]): need,why={4:8,8:12}[ps],"mfma->valu/mem"
                if ck=="valu" and p["C"] & c["dst"]:
                    n={4:3,8:7}[ps]
                    if n>need: need,why=n,"mfma C WAR"
            if p["kind"]=="vmem" and p.get("wide") and p["data"] & c["dst"]:
                n = 2 if ck=="valu" else 1
                if n>need: need,why=n,"wide store WAR"
            if p["kind"]=="salu" and ("s","m0") in sd and ("s","m0") in c["src"] and ck in("vmem","ds"): need,why=max(need,1),"m0->lds"
            if need > dist:
                print(f"HAZARD[{name}] {why}: need {need} have {dist}\n    {p['line']}\n    {c['line']}"); nw += 1
            if p["op"]=="s_nop": dist += int(p["toks"][0],0)+1
            else: dist += 1
    return nw
```

```python
import gen
from asmb import *
def empty(n="e_kernel"):
    k = Kern(n, (256,1,1), (256,1,1), lds=0, vgpr=8, sgpr=16)
    k("s_endpgm")
    return k
c = gen.Cfg()
e = empty()
build([gen.p1(c),gen.p2(c),gen.p3(c),gen.p4(c)], 'e0.s')
build([gen.p1(c),gen.p2(c),gen.p3(c),gen.p4(c),e,e,e,e], 'e4.s')
build([e,e,e,e,gen.p1(c),gen.p2(c),gen.p3(c),gen.p4(c)], 'e4f.s')
```

```python
import gen
from asmb import *
c = gen.Cfg()
def mk(X, path):
    p1 = gen.p1(c)
    pre = Kern("x",(1,1,1),(64,1,1))
    pre(f"""
    s_cmp_lg_u32 s2, 0
    s_cbranch_scc1 p1_skipts
    s_memrealtime s[60:61]
    s_load_dwordx2 s[62:63], s[0:1], 96
    s_waitcnt lgkmcnt(0)
    s_add_u32 s62, s62, {gen.TS:#x}
    s_addc_u32 s63, s63, 0
    v_mov_b32 v10, s60
    v_mov_b32 v11, 0
    global_store_dword v11, v10, s[62:63]
    p1_skipts:""")
    p1.lines = pre.lines + p1.lines
    e = Kern("e_kernel",(1,1,1),(64,1,1), vgpr=16, sgpr=32)
    e(f"""
    s_cmp_lg_u32 s2, 0
    s_cbranch_scc1 e_end
    s_load_dwordx2 s[4:5], s[0:1], 96
    s_waitcnt lgkmcnt(0)
    s_add_u32 s4, s4, {gen.TS:#x}
    s_addc_u32 s5, s5, 0
    s_load_dword s6, s[4:5], 0
    s_movk_i32 s10, 20000
    s_waitcnt lgkmcnt(0)
    e_loop:
    s_memrealtime s[8:9]
    s_sub_u32 s10, s10, 1
    s_cmp_eq_u32 s10, 0
    s_cbranch_scc1 e_end
    s_waitcnt lgkmcnt(0)
    s_sub_u32 s8, s8, s6
    s_cmp_lt_u32 s8, {X}
    s_cbranch_scc1 e_loop
    e_end:
    s_endpgm""")
    build([p1, gen.p2(c), gen.p3(c), gen.p4(c), e], path)
mk(6000, "ovh60.s")
mk(8000, "ovh80.s")
```

```python
import gen
from asmb import *
c = gen.Cfg()
def spin(X):
    e = Kern("e_kernel",(1,1,1),(64,1,1), vgpr=16, sgpr=32)
    e(f"""
    s_cmp_lg_u32 s2, 0
    s_cbranch_scc1 e_end
    s_load_dwordx2 s[4:5], s[0:1], 96
    s_waitcnt lgkmcnt(0)
    s_add_u32 s4, s4, {gen.TS:#x}
    s_addc_u32 s5, s5, 0
    s_load_dword s6, s[4:5], 0
    s_movk_i32 s10, 20000
    s_waitcnt lgkmcnt(0)
    e_loop:
    s_memrealtime s[8:9]
    s_sub_u32 s10, s10, 1
    s_cmp_eq_u32 s10, 0
    s_cbranch_scc1 e_end
    s_waitcnt lgkmcnt(0)
    s_sub_u32 s8, s8, s6
    s_cmp_lt_u32 s8, {X}
    s_cbranch_scc1 e_loop
    e_end:
    s_endpgm""")
    return e
def stamp(k):
    pre = Kern("x",(1,1,1),(64,1,1))
    pre(f"""
    s_cmp_lg_u32 s2, 0
    s_cbranch_scc1 p1_skipts
    s_memrealtime s[60:61]
    s_load_dwordx2 s[62:63], s[0:1], 96
    s_waitcnt lgkmcnt(0)
    s_add_u32 s62, s62, {gen.TS:#x}
    s_addc_u32 s63, s63, 0
    v_mov_b32 v10, s60
    v_mov_b32 v11, 0
    global_store_dword v11, v10, s[62:63]
    p1_skipts:""")
    k.lines = pre.lines + k.lines
if __name__ == "__main__":
    for i in range(4):
        ks = [gen.p1(c), gen.p2(c), gen.p3(c), gen.p4(c)]
        stamp(ks[i])
        build(ks+[spin(6000)], f"ovh_k{i}.s")
```

```python
import gen
from asmb import *
from mk_ovh import spin, stamp
c = gen.Cfg()
def S():
    k = Kern("s_kernel",(1,1,1),(64,1,1), vgpr=16, sgpr=64)
    k("s_endpgm")
    stamp(k)
    return k
ks = lambda: [gen.p1(c), gen.p2(c), gen.p3(c), gen.p4(c)]
build(ks()+[S(), spin(1)], "o2a.s")
build(ks()+[S(), spin(2000)], "o2b.s")
build(ks()+[S(), spin(6000)], "o2c.s")
build([S(), spin(2000)]+ks(), "o2d.s")
build([S(), spin(6000)]+ks(), "o2e.s")
```
